```python
import torch

def _softmax(x, axis=-1):
    return torch.softmax(x, dim=axis)
def _gelu(x):
    return torch.nn.functional.gelu(x, approximate="tanh")
def _silu(x):
    return torch.nn.functional.silu(x)
def _sigmoid(x):
    return torch.sigmoid(x)
def _layernorm(x, axis=-1, eps=1e-5):
    m = x.mean(dim=axis, keepdim=True)
    v = x.var(dim=axis, keepdim=True, unbiased=False)
    return (x - m) / torch.sqrt(v + eps)
def _scatter_add(tgt, idx, src, axis=0):
    return tgt.clone().index_add_(axis, idx, src)
def _segment_sum(src, seg, n):
    out = torch.zeros((n,) + src.shape[1:], dtype=src.dtype)
    return out.index_add_(0, seg, src)
def _pad(x, pw):
    flat = tuple(v for pair in reversed(pw) for v in pair)
    return torch.nn.functional.pad(x, flat)

kernel_name = 'interleave_layers__linear_kernel_hedgehog__sliding_local_dilated__prompt'

def setup_inputs():

    _w = (lambda a: (lambda t: t.to(torch.bfloat16) if t.is_floating_point() else t)(torch.as_tensor(a)))
    def _A_setup():
        B, S, D, H = 1, 2048, 512, 32
        Dh = D // H
        return {
            "x": _w((lambda *s: torch.randn(*s, dtype=torch.bfloat16) * 0.05)(B, S, D)),
            "wqkv": _w((lambda *s: torch.randn(*s, dtype=torch.bfloat16) * 0.4)(D, 3 * D)),
            "w_phi": _w((lambda *s: torch.randn(*s, dtype=torch.bfloat16) * 0.4)(H, Dh, Dh) * (Dh ** -0.5)),
            "wo": _w((lambda *s: torch.randn(*s, dtype=torch.bfloat16) * 0.05)(D, D)),
        }
    _A_in = _A_setup()

    def _B_setup():
        B, S, D = 1, 2048, 512
        return {
            "x": _w((lambda *s: torch.randn(*s, dtype=torch.bfloat16) * 0.05)(B, S, D)),
            "wqkv": _w((lambda *s: torch.randn(*s, dtype=torch.bfloat16) * 0.1)(D, 3 * D)),
            "wo": _w((lambda *s: torch.randn(*s, dtype=torch.bfloat16) * 0.05)(D, D)),
        }
    _B_in = _B_setup()

    return {
        "A_x": _A_in["x"],
        "A_wqkv": _A_in["wqkv"],
        "A_w_phi": _A_in["w_phi"],
        "A_wo": _A_in["wo"],
        "B_x": _B_in["x"],
        "B_wqkv": _B_in["wqkv"],
        "B_wo": _B_in["wo"],
    }

def reference(A_x, A_wqkv, A_w_phi, A_wo, B_x, B_wqkv, B_wo):
    def _A_ref(x, wqkv, w_phi, wo):
        B, S, D = x.shape
        H = 32; Dh = D // H
        qkv = (lambda x, *d: x.permute(*d))((x @ wqkv).reshape(B, S, 3, H, Dh), 2, 0, 3, 1, 4)
        q, k, v = qkv[0], qkv[1], qkv[2]
        pq = torch.einsum("bhsd,hdf->bhsf", q, w_phi)
        pk = torch.einsum("bhsd,hdf->bhsf", k, w_phi)
        phi_q = torch.concatenate([_softmax(pq, axis=-1), _softmax(-pq, axis=-1)], axis=-1)
        phi_k = torch.concatenate([_softmax(pk, axis=-1), _softmax(-pk, axis=-1)], axis=-1)
        kv = torch.einsum("bhsf,bhsd->bhfd", phi_k, v)
        z  = torch.einsum("bhsf->bhf", phi_k)
        num = torch.einsum("bhqf,bhfd->bhqd", phi_q, kv)
        den = torch.einsum("bhqf,bhf->bhq", phi_q, z)[..., None] + 1e-6
        o = num / den
        return (lambda x, *d: x.permute(*d))(o, 0, 2, 1, 3).reshape(B, S, D) @ wo

    def _B_ref(x, wqkv, wo):
        B, S, D = x.shape
        H = 32; Dh = D // H
        W, dil = 8, 2
        qkv = (lambda x, *d: x.permute(*d))((x @ wqkv).reshape(B, S, 3, H, Dh), 2, 0, 3, 1, 4)
        q, k, v = qkv[0], qkv[1], qkv[2]
        scale = Dh ** -0.5
        pos = torch.arange(S)
        off = torch.arange(W) * dil
        idx = pos[:, None] - off[None, :]
        mask = idx >= 0
        idx_c = torch.where(mask, idx, 0).reshape(-1)
        kg = k[:, :, idx_c, :].reshape(B, H, S, W, Dh)
        vg = v[:, :, idx_c, :].reshape(B, H, S, W, Dh)
        logits = torch.einsum("bhsd,bhswd->bhsw", q, kg) * scale
        logits = torch.where(mask[None, None, :, :], logits, -1e9)
        attn = _softmax(logits, axis=-1)
        o = torch.einsum("bhsw,bhswd->bhsd", attn, vg)
        return (lambda x, *d: x.permute(*d))(o, 0, 2, 1, 3).reshape(B, S, D) @ wo

    x = A_x
    x = x + _A_ref(_layernorm(x, axis=-1), A_wqkv, A_w_phi, A_wo)
    x = x + _B_ref(_layernorm(x, axis=-1), B_wqkv, B_wo)
    x = x + _A_ref(_layernorm(x, axis=-1), A_wqkv, A_w_phi, A_wo)
    x = x + _B_ref(_layernorm(x, axis=-1), B_wqkv, B_wo)
    return x
```

```python
import re

_REG = re.compile(r"^(-?)(?:abs\()?([vsa])(?:(\d+)|\[(\d+):(\d+)\])\)?$")

TRANS = ("v_exp_f32", "v_log_f32", "v_rcp_f32", "v_rsq_f32", "v_sqrt_f32", "v_sin_f32", "v_cos_f32")


def regs(tok):
    tok = tok.strip()
    if tok in ("vcc",):
        return {("s", "vcc")}
    if tok in ("exec",):
        return {("s", "exec")}
    if tok == "m0":
        return {("s", "m0")}
    m = _REG.match(tok)
    if not m:
        return set()
    k = m.group(2)
    if m.group(3) is not None:
        return {(k, int(m.group(3)))}
    return {(k, i) for i in range(int(m.group(4)), int(m.group(5)) + 1)}


def split_ops(s):
    out, depth, cur = [], 0, ""
    for ch in s:
        if ch in "[(":
            depth += 1
        if ch in "])":
            depth -= 1
        if ch == "," and depth == 0:
            out.append(cur.strip())
            cur = ""
        else:
            cur += ch
    if cur.strip():
        out.append(cur.strip())
    return out


class I:
    __slots__ = ("text", "mn", "defs", "uses", "kind", "passes", "srcc", "srcab", "is_label", "states", "wide_store_data", "sgpr_uses")

    def __init__(self, text):
        self.text = text
        self.is_label = text.endswith(":")
        self.defs = set()
        self.uses = set()
        self.kind = "other"
        self.passes = 0
        self.srcc = set()
        self.srcab = set()
        self.states = 1
        self.wide_store_data = set()
        self.mn = ""
        if self.is_label or text.startswith(";") or text.startswith("."):
            self.states = 0
            self.kind = "meta"
            return
        parts = text.split(None, 1)
        mn = parts[0]
        self.mn = mn
        rest = parts[1] if len(parts) > 1 else ""
        rest = rest.split(";")[0]
        ops = split_ops(rest)
        if ops:
            last = ops[-1].split()
            mods = last[1:]
            ops[-1] = last[0] if last else ""
        else:
            mods = []
        R = [regs(o) for o in ops]
        if mn == "s_nop":
            self.states = int(ops[0], 0) + 1
            self.kind = "nop"
        elif mn.startswith("v_mfma"):
            self.kind = "mfma"
            self.passes = 8 if "32x32" in mn else 4
            self.defs = R[0]
            self.srcab = R[1] | R[2]
            self.srcc = R[3]
            self.uses = self.srcab | self.srcc
        elif mn.startswith("v_"):
            self.kind = "valu"
            if mn.startswith("v_permlane") and "swap" in mn:
                self.defs = R[0] | R[1]
                self.uses = R[0] | R[1]
                self.kind = "perm"
            elif mn.startswith("v_cmp"):
                self.defs = R[0]
                for r in R[1:]:
                    self.uses |= r
            else:
                self.defs = R[0]
                for r in R[1:]:
                    self.uses |= r
                if mn.startswith("v_dot2c") or mn.startswith("v_fmac") or mn.startswith("v_pk_fmac"):
                    self.uses |= R[0]
                if mn.startswith("v_cndmask") and len(ops) == 3:
                    self.uses |= {("s", "vcc")}
            if mn in TRANS or mn.replace("_e32", "").replace("_e64", "") in TRANS:
                self.kind = "trans"
            if mn.startswith("v_dot"):
                self.kind = "dot"
            if mn.startswith("v_readfirstlane") or mn.startswith("v_readlane"):
                self.kind = "readlane"
        elif mn.startswith("ds_"):
            self.kind = "ds"
            if mn.startswith("ds_read") or mn.startswith("ds_bpermute") or mn.startswith("ds_swizzle"):
                self.defs = R[0]
                for r in R[1:]:
                    self.uses |= r
            else:
                for r in R:
                    self.uses |= r
        elif mn.startswith("buffer_") or mn.startswith("global_"):
            self.kind = "vmem"
            if "lds" in mods:
                for r in R:
                    self.uses |= r
                self.uses |= {("s", "m0")}
                self.kind = "vmem_lds"
            elif "_load" in mn:
                self.defs = R[0]
                for r in R[1:]:
                    self.uses |= r
                if "d16" in mn:
                    self.uses |= R[0]
            else:
                for r in R:
                    self.uses |= r
                if "dwordx4" in mn or "dwordx3" in mn:
                    self.wide_store_data = R[0]
        elif mn.startswith("s_"):
            self.kind = "salu"
            if mn.startswith("s_cmp") or mn.startswith("s_cbranch") or mn in ("s_branch", "s_barrier", "s_waitcnt", "s_endpgm", "s_sleep", "s_setprio"):
                for r in R:
                    self.uses |= r
            else:
                if R:
                    self.defs = R[0]
                for r in R[1:]:
                    self.uses |= r


VALU_KINDS = ("valu", "trans", "dot", "perm", "readlane")


def need_states(prev, cur):
    n = 0
    pv = prev.kind in VALU_KINDS
    cv = cur.kind in VALU_KINDS
    vdefs = {r for r in prev.defs if r[0] in "va"}
    sdefs = {r for r in prev.defs if r[0] == "s"}
    if pv:
        if cur.kind == "mfma" and vdefs & cur.uses:
            n = max(n, 3 if prev.kind == "dot" else 2)
        if cur.kind == "perm" and vdefs & cur.uses:
            n = max(n, 3 if prev.kind == "dot" else 2)
        if cur.kind == "readlane" and vdefs & cur.uses:
            n = max(n, 3 if prev.kind == "dot" else 1)
        if prev.kind == "trans" and cv and cur.kind != "trans" and vdefs & cur.uses:
            n = max(n, 1)
        if prev.kind == "trans" and cur.kind in ("ds", "vmem", "vmem_lds") and vdefs & cur.uses:
            n = max(n, 1)
        if prev.kind == "dot" and vdefs & (cur.uses | cur.defs):
            same = cur.kind == "dot" and cur.mn == prev.mn
            if same:
                ops_ab = cur.uses - cur.defs
                if vdefs & ops_ab:
                    n = max(n, 3)
            else:
                n = max(n, 3)
        if sdefs:
            if cv and sdefs & cur.uses:
                n = max(n, 4 if cur.kind == "readlane" else 2)
            if cur.kind in ("vmem", "vmem_lds") and sdefs & cur.uses:
                n = max(n, 5)
            if cur.kind == "salu" and sdefs & cur.uses:
                n = max(n, 1)
            if cur.kind == "mfma" and ("s", "exec") in sdefs:
                n = max(n, 4)
    if prev.kind == "mfma":
        p = prev.passes
        big = {4: 8, 8: 12}[p]
        if cur.kind == "mfma":
            if prev.defs & cur.srcab:
                n = max(n, big)
            if prev.defs & cur.srcc:
                if not (prev.defs == cur.srcc and cur.passes == p):
                    n = max(n, {4: 6, 8: 10}[p])
            elif prev.defs & cur.defs:
                n = max(n, big)
        elif cv:
            if prev.defs & (cur.uses | cur.defs):
                n = max(n, big)
            if prev.srcc & cur.defs:
                n = max(n, {4: 3, 8: 7}[p])
        elif cur.kind in ("ds", "vmem", "vmem_lds"):
            if prev.defs & (cur.uses | cur.defs):
                n = max(n, big)
    if prev.kind == "salu" and ("s", "m0") in prev.defs and cur.kind == "vmem_lds":
        n = max(n, 1)
    if prev.wide_store_data and prev.wide_store_data & cur.defs:
        n = max(n, 2 if cv or cur.kind == "mfma" else 1)
    return n


class Asm:
    def __init__(self):
        self.ins = []

    def __call__(self, text):
        for line in text.strip().split("\n"):
            line = line.strip()
            if line:
                self.ins.append(I(line))

    def label(self, name):
        self.ins.append(I(name + ":"))

    def comment(self, c):
        self.ins.append(I("; " + c))

    def finalize(self, lookback=24):
        out = []
        for cur in self.ins:
            if cur.kind != "meta":
                dist = 0
                need = 0
                for prev in reversed(out):
                    if prev.kind == "meta":
                        continue
                    if dist >= lookback:
                        break
                    ns = need_states(prev, cur)
                    if ns > dist:
                        need = max(need, ns - dist)
                    dist += prev.states
                while need > 0:
                    k = min(need, 16)
                    out.append(I("s_nop %d" % (k - 1)))
                    need -= k
            out.append(cur)
        return out

    def text(self):
        lines = []
        for i in self.finalize():
            if i.is_label:
                lines.append(i.text)
            else:
                lines.append("    " + i.text)
        return "\n".join(lines) + "\n"
```

```python
import sys
sys.path.insert(0, "dev")
from asmlib import Asm

NAME = "interleave_layers__linear_kernel_hedgehog__sliding_local_dilated__prompt"
KN = NAME + "_kernel"

MB = 1 << 20
XF0 = 0
OF0 = 8 * MB
KVP0 = 16 * MB
KVP_STRIDE = 4608
FLG = 20 * MB
FX = FLG
FO = FLG + 8192
FK = FLG + 16384
WS_BYTES = 268435456

SLOT = 12288
WOB = 98304
MISC = 163840 - 4096
PHI = 0
VV = 16384
KVF = 24576
ZF = 26624
KK = 0
VF = 9216

sWG = "s2"
sW8 = "s3"
sC, sI, sRH, sCB = "s4", "s5", "s6", "s7"
X0, WQA, WPHI, WOA, WQB, WOBS, OUT, DBG, WS, XS, CODE = (
    "s[8:11]", "s[12:15]", "s[16:19]", "s[20:23]", "s[24:27]", "s[28:31]", "s[32:35]", "s[36:39]", "s[40:43]", "s[44:47]", "s[48:51]")
sIT, sL, sOff, sStride, sCnt, sXB, sOFB, sXFB, sKVB, sFXs, sFOs, sFKs = (
    "s52", "s53", "s54", "s55", "s56", "s57", "s58", "s59", "s60", "s61", "s62", "s63")
sLOG, sNLOG, sQLOG, sKVM = "s[64:65]", "s[66:67]", "s[68:69]", "s[70:71]"
sW = "s72"
sT0, sT1, sT2, sT3 = "s73", "s74", "s75", "s76"
sHX = "s77"
sH1K = "s78"
POLL_MAX = 200000

LOG2E = 0x3FB8AA3B
NLOG2E = 0xBFB8AA3B
QLOG2E = 0x3EB8AA3B


def v(n, cnt=1):
    return "v%d" % n if cnt == 1 else "v[%d:%d]" % (n, n + cnt - 1)


vLane = 1
vXaddr = 2
vWb = 3
vHX = 7
vWh = 8
vOnes = 10
vS, vQ, vHS, vHQ = 11, 12, 13, 14
vTmp = 15
vRes = 16
vPhi = 32
vWbuf = 40
vAcc = 64
vHacc = 112
vX = 116
vPollX, vPollO, vOld, vWob, vXst, vOstA, vOstB, vOutst = 244, 245, 246, 247, 251, 252, 253, 254
vT2 = 255

a = Asm()


def poll(tag, vaddr, srd, cmp_s, vtmp, eq=False):
    a("s_mov_b32 %s, %d" % (sCnt, POLL_MAX))
    a.label("L_poll_%s" % tag)
    a("buffer_load_dword %s, %s, %s, 0 offen sc1" % (v(vtmp), v(vaddr), srd))
    a("s_waitcnt vmcnt(0)")
    if eq:
        a("v_cmp_ne_u32 vcc, %s, %s" % (cmp_s, v(vtmp)))
    else:
        a("v_cmp_gt_u32 vcc, %s, %s" % (cmp_s, v(vtmp)))
    a("s_nop 1")
    a("s_cbranch_vccz L_polldone_%s" % tag)
    a("s_sub_u32 %s, %s, 1" % (sCnt, sCnt))
    a("s_cbranch_scc1 L_polldone_%s" % tag)
    a("s_branch L_poll_%s" % tag)
    a.label("L_polldone_%s" % tag)


def flag_store(soff, vtmp):
    a("v_mov_b32 %s, %s" % (v(vtmp), sL))
    a("s_waitcnt vmcnt(0)")
    a("s_mov_b64 exec, 1")
    a("buffer_store_dword %s, off, %s, %s sc1" % (v(vtmp), WS, soff))
    a("s_mov_b64 exec, -1")


import os
DEBUG = os.environ.get("DEBUG", "")
DBGB = 32 * MB


def dump(name, reg, n, slot, layer=None):
    if name not in DEBUG.split(","):
        return
    if layer is not None:
        a("s_cmp_lg_u32 %s, %d" % (sL, layer))
        a("s_cbranch_scc1 L_nodump_%s" % name)
    a("s_nop 7")
    a("s_nop 7")
    a("s_lshl_b32 s100, %s, 2" % sWG)
    a("s_add_u32 s100, s100, %s" % sW)
    a("s_lshl_b32 s100, s100, 16")
    a("s_add_u32 s100, s100, %d" % (DBGB + slot * 256))
    a("v_lshlrev_b32 %s, 2, %s" % (v(vT2), v(vLane)))
    for r in range(n):
        a("buffer_store_dword %s, %s, %s, s100 offen" % (v(reg + r), v(vT2), WS))
        a("s_add_u32 s100, s100, 256")
    a("s_waitcnt vmcnt(0)")
    if layer is not None:
        a.label("L_nodump_%s" % name)


def srd(dst, lo, hi, nbytes):
    base = int(dst[2:dst.index(":")])
    a("s_mov_b32 s%d, %s" % (base, lo))
    a("s_and_b32 s%d, %s, 0xffff" % (base + 1, hi))
    a("s_mov_b32 s%d, %d" % (base + 2, nbytes))
    a("s_mov_b32 s%d, 0x00020000" % (base + 3))


def lanebits(dst, shift, mask):
    if shift == 0:
        a("v_and_b32 %s, %d, %s" % (v(dst), mask, v(vLane)))
    else:
        a("v_bfe_u32 %s, %s, %d, %d" % (v(dst), v(vLane), shift, mask.bit_length()))


def lin(dst, terms, const=0, sadd=None, tmp=vTmp):
    first = True
    for (shift, mask, mul) in terms:
        t = dst if first else tmp
        lanebits(t, shift, mask)
        if mul & (mul - 1) == 0:
            sh = mul.bit_length() - 1
            if first:
                if sh:
                    a("v_lshlrev_b32 %s, %d, %s" % (v(dst), sh, v(dst)))
            else:
                a("v_lshl_add_u32 %s, %s, %d, %s" % (v(dst), v(t), sh, v(dst)))
        else:
            a("v_mul_u32_u24 %s, %d, %s" % (v(t), mul, v(t)))
            if not first:
                a("v_add_u32 %s, %s, %s" % (v(dst), v(t), v(dst)))
        first = False
    if const:
        a("v_add_u32 %s, %d, %s" % (v(dst), const, v(dst)))
    if sadd:
        a("v_add_u32 %s, %s, %s" % (v(dst), sadd, v(dst)))


T32 = (0, 31)
HF = (5, 1)
T16 = (0, 15)
G4 = (4, 3)
G4L = (4, 1)
G4H = (5, 1)
R4 = (2, 3)
C4 = (0, 3)


def set_wb(layer1):
    for sb in range(2):
        for half in range(2):
            if layer1:
                const = (sb * 16 + half * 4) * 64
                lin(vWb + sb * 2 + half, [HF + (8 * 64,), R4 + (64,), G4L + (32,), C4 + (8,)], const)
            else:
                const = (sb * 8 + half * 16) * 64
                lin(vWb + sb * 2 + half, [HF + (4 * 64,), R4 + (64,), G4L + (32,), C4 + (8,)], const)


def prologue():
    a("s_cmp_ge_u32 %s, 256" % sWG)
    a("s_cbranch_scc1 L_end")
    a("s_load_dwordx16 s[80:95], s[0:1], 0")
    a("s_load_dwordx4 s[96:99], s[0:1], 64")
    a("v_lshrrev_b32 v1, 6, v0")
    a("s_nop 0")
    a("v_readfirstlane_b32 %s, v1" % sW8)
    a("v_and_b32 %s, 63, v0" % v(vLane))
    a("s_and_b32 %s, %s, 7" % (sT0, sWG))
    a("s_lshr_b32 %s, %s, 3" % (sT1, sWG))
    a("s_lshl_b32 %s, %s, 1" % (sC, sT0))
    a("s_lshr_b32 %s, %s, 4" % (sT0, sT1))
    a("s_add_u32 %s, %s, %s" % (sC, sC, sT0))
    a("s_and_b32 %s, %s, 15" % (sI, sT1))
    a("s_lshr_b32 %s, %s, 3" % (sRH, sI))
    a("s_and_b32 %s, %s, 7" % (sCB, sI))
    a("s_and_b32 %s, %s, 3" % (sW, sW8))
    a("s_getpc_b64 s[48:49]")
    a.label("L_pc")
    a("s_sub_u32 s48, s48, L_pc-%s" % KN)
    a("s_subb_u32 s49, s49, 0")
    a("s_and_b32 s49, s49, 0xffff")
    a("s_mov_b32 s50, L_codeend-%s" % KN)
    a("s_mov_b32 s51, 0x00020000")
    a("s_mov_b32 s64, 0x%x" % LOG2E)
    a("s_mov_b32 s65, 0x%x" % LOG2E)
    a("s_mov_b32 s66, 0x%x" % NLOG2E)
    a("s_mov_b32 s67, 0x%x" % NLOG2E)
    a("s_mov_b32 s68, 0x%x" % QLOG2E)
    a("s_mov_b32 s69, 0x%x" % QLOG2E)
    a("s_mov_b32 s70, 0x0000ffff")
    a("s_mov_b32 s71, 0xffff0000")
    a("s_mov_b32 %s, 0" % sIT)
    a("s_mov_b32 %s, 1" % sL)
    a("s_lshl_b32 %s, %s, 2" % (sT0, sC))
    a("s_lshl_b32 %s, %s, 1" % (sT1, sRH))
    a("s_add_u32 %s, %s, %s" % (sT1, sT1, sT0))
    a("s_lshr_b32 %s, %s, 1" % (sT2, sW))
    a("s_add_u32 %s, %s, %s" % (sT1, sT1, sT2))
    a("s_lshl_b32 %s, %s, 7" % (sFXs, sT1))
    a("s_lshl_b32 %s, %s, 1" % (sT2, sCB))
    a("s_and_b32 %s, %s, 1" % (sT3, sW))
    a("s_add_u32 %s, %s, %s" % (sT2, sT2, sT3))
    a("s_lshl_b32 %s, %s, 2" % (sT2, sT2))
    a("s_add_u32 %s, %s, %s" % (sFXs, sFXs, sT2))
    a("s_add_u32 %s, %s, %d" % (sFXs, sFXs, FX))
    a("s_add_u32 %s, %s, %s" % (sT1, sT0, sW))
    a("s_lshl_b32 %s, %s, 7" % (sFOs, sT1))
    a("s_lshl_b32 %s, %s, 2" % (sT2, sI))
    a("s_add_u32 %s, %s, %s" % (sFOs, sFOs, sT2))
    a("s_add_u32 %s, %s, %d" % (sFOs, sFOs, FO))
    a("s_lshl_b32 %s, %s, 8" % (sFKs, sI))
    a("s_lshl_b32 %s, %s, 2" % (sT2, sT1))
    a("s_add_u32 %s, %s, %s" % (sFKs, sFKs, sT2))
    a("s_add_u32 %s, %s, %d" % (sFKs, sFKs, FK))
    a("s_waitcnt lgkmcnt(0)")
    srd(X0, "s80", "s81", 2097152)
    srd(WQA, "s82", "s83", 1572864)
    srd(WPHI, "s84", "s85", 16384)
    srd(WOA, "s86", "s87", 524288)
    srd(WQB, "s90", "s91", 1572864)
    srd(WOBS, "s92", "s93", 524288)
    srd(OUT, "s94", "s95", 2097152)
    srd(DBG, "s96", "s97", 256)
    srd(WS, "s98", "s99", WS_BYTES)
    srd(XS, "s80", "s81", 2097152)
    a("s_cmp_ge_u32 %s, 4" % sW8)
    a("s_cbranch_scc1 L_helper")


def compute_init():
    a("s_setprio 2")
    a("v_mov_b32 %s, 0" % v(vTmp))
    a("s_mov_b64 exec, 1")
    for s in (sFXs, sFOs, sFKs):
        a("buffer_store_dword %s, off, %s, %s sc1" % (v(vTmp), WS, s))
    a("s_mov_b64 exec, -1")
    t = vX
    lin(t, [(2, 1, 512), (3, 3, 8), (0, 3, 2), HF + (4 * 32,)])
    a("s_lshl_b32 %s, %s, 10" % (sT0, sI))
    for j in range(8):
        off = ((j >> 2) * 8 + (j & 3)) * 32
        a("buffer_load_ushort %s, %s, %s, %s offen offset:%d" % (v(vWbuf + 12 + j), v(t), WPHI, sT0, off))
    a("s_lshl_b32 %s, %s, 1" % (sT0, sC))
    a("s_add_u32 %s, %s, %s" % (sT0, sT0, sRH))
    a("s_lshl_b32 %s, %s, 2" % (sT0, sT0))
    a("s_add_u32 %s, %s, %s" % (sT0, sT0, sW))
    a("s_lshl_b32 %s, %s, 14" % (sT1, sT0))
    a("s_lshl_b32 %s, %s, 7" % (sT2, sCB))
    a("s_add_u32 %s, %s, %s" % (sT1, sT1, sT2))
    lin(vOutst, [T16 + (1024,), G4 + (8,)], 0, sT1)
    for ct in range(4):
        a("buffer_load_dwordx2 %s, %s, %s, 0 offen offset:%d" % (v(vWbuf + 4 + ct * 2, 2), v(vOutst), X0, ct * 32))
    a("s_lshl_b32 %s, %s, 2" % (sT1, sC))
    a("s_add_u32 %s, %s, %s" % (sT1, sT1, sW))
    a("s_lshl_b32 %s, %s, 15" % (sXB, sT1))
    lin(vXaddr, [T32 + (1024,), HF + (16,)])
    a("s_mov_b32 %s, 32" % sStride)
    set_wb(True)
    a("v_lshlrev_b32 %s, 4, %s" % (v(vOld), v(vLane)))
    lin(vHX, [G4H + (1024,), G4L + (512,), T16 + (16,)], 256)
    a("s_and_b32 %s, %s, 1" % (sT2, sW))
    a("s_lshl_b32 %s, %s, 5" % (sT2, sT2))
    a("s_lshr_b32 %s, %s, 1" % (sT3, sW))
    a("s_lshl_b32 %s, %s, 12" % (sT3, sT3))
    a("s_add_u32 %s, %s, %s" % (sT2, sT2, sT3))
    lin(vWh, [G4H + (512,), G4L + (256,), R4 + (64,), C4 + (8,)], 4096, sT2)
    a("v_add_u32 %s, %d, %s" % (v(vWh + 1), 5 * SLOT, v(vWh)))
    a("s_lshl_b32 %s, %s, 2" % (sT2, sC))
    a("s_sub_u32 %s, %s, 1" % (sT2, sT2))
    a("s_cmp_eq_u32 %s, 0" % sC)
    a("s_cselect_b32 %s, 0, %s" % (sT2, sT2))
    a("s_lshl_b32 %s, %s, 15" % (sHX, sT2))
    a("s_lshl_b32 %s, %s, 7" % (sT2, sT2))
    a("s_lshl_b32 %s, %s, 7" % (sT3, sT1))
    lin(vPollX, [T16 + (4,)], FX, sT3)
    lin(vT2, [(0, 7, 8)], FX + 4, sT2)
    lanebits(vTmp, 4, 3)
    a("v_cmp_eq_u32 vcc, 1, %s" % v(vTmp))
    a("v_cndmask_b32 %s, %s, %s, vcc" % (v(vPollX), v(vPollX), v(vT2)))
    a("s_lshr_b32 %s, %s, 1" % (sT2, sT0))
    a("s_lshl_b32 %s, %s, 7" % (sT2, sT2))
    lin(vPollO, [T16 + (4,)], FO, sT2)
    lin(vT2, [G4L + (2,), (3, 1, 1)])
    for ct in range(4):
        lin(vWob + ct, [G4H + (2048,), G4L + (512,), R4 + (128,), C4 + (8,)], WOB)
        a("v_xor_b32 %s, %d, %s" % (v(vTmp), ct, v(vT2)))
        a("v_lshl_add_u32 %s, %s, 5, %s" % (v(vWob + ct), v(vTmp), v(vWob + ct)))
    a("s_lshr_b32 %s, %s, 1" % (sT2, sT0))
    a("s_lshl_b32 %s, %s, 15" % (sT2, sT2))
    a("s_lshl_b32 %s, %s, 12" % (sT3, sCB))
    a("s_add_u32 %s, %s, %s" % (sT2, sT2, sT3))
    a("s_and_b32 %s, %s, 1" % (sT3, sW))
    a("s_lshl_b32 %s, %s, 8" % (sT3, sT3))
    a("s_add_u32 %s, %s, %s" % (sT2, sT2, sT3))
    lin(vXst, [G4H + (1024,), G4L + (512,), T16 + (16,)], 0, sT2)
    a("s_lshl_b32 %s, %s, 15" % (sT2, sT1))
    a("s_lshl_b32 %s, %s, 10" % (sT3, sI))
    a("s_add_u32 %s, %s, %s" % (sT2, sT2, sT3))
    lin(vOstA, [(4, 1, 16384), HF + (256,), T16 + (16,)], 0, sT2)
    lin(vOstB, [(4, 1, 16384), HF + (512,), T16 + (16,)], 0, sT2)
    a("v_mov_b32 %s, 0x3f803f80" % v(vOnes))
    a("s_mov_b32 %s, %d" % (sOFB, OF0))
    a("s_mov_b32 %s, %d" % (sXFB, XF0))
    a("s_mul_i32 %s, %s, %d" % (sKVB, sI, 16 * KVP_STRIDE))
    a("s_mul_i32 %s, %s, %d" % (sT2, sC, KVP_STRIDE))
    a("s_add_u32 %s, %s, %s" % (sKVB, sKVB, sT2))
    a("s_add_u32 %s, %s, %d" % (sKVB, sKVB, KVP0))
    a("s_branch L_A_loads")


def layer1_post():
    for m in range(4):
        a("v_lshl_or_b32 %s, %s, 16, %s" % (v(vWbuf + m), v(vWbuf + 12 + 2 * m + 1), v(vWbuf + 12 + 2 * m)))
    lanebits(vTmp, 2, 1)
    a("v_cmp_eq_u32 vcc, 0, %s" % v(vTmp))
    for m in range(4):
        a("v_cndmask_b32 %s, 0, %s, vcc" % (v(vPhi + m), v(vWbuf + m)))
    for m in range(4):
        a("v_cndmask_b32 %s, %s, 0, vcc" % (v(vPhi + 4 + m), v(vWbuf + m)))
    for ct in range(4):
        for h in range(2):
            src = vWbuf + 4 + ct * 2 + h
            a("v_lshlrev_b32 %s, 16, %s" % (v(vRes + ct * 4 + h * 2), v(src)))
            a("v_and_b32 %s, 0xffff0000, %s" % (v(vRes + ct * 4 + h * 2 + 1), v(src)))


def wfrag_read(s, ft):
    ch = s >> 2
    base = (ch * SLOT if ch < 5 else (ch - 5) * SLOT) + ft * 4096 + ((s >> 1) & 1) * 2048
    dst = vWbuf + (s & 1) * 12 + ft * 4
    for half in range(2):
        a("ds_read_b64_tr_b16 %s, %s offset:%d" % (v(dst + half * 2, 2), v(vWb + (s & 1) * 2 + half), base))


def qkv_gemm(tag, halo):
    a("s_mov_b32 %s, %s" % (sOff, sXB))
    for s in range(32):
        a("buffer_load_dwordx4 %s, %s, %s, %s offen sc1" % (v(vX + s * 4, 4), v(vXaddr), XS, sOff))
        if s < 31:
            a("s_add_u32 %s, %s, %s" % (sOff, sOff, sStride))
    if tag == "A":
        a("s_cmp_lg_u32 %s, 1" % sL)
        a("s_cbranch_scc1 L_A_not1")
        a("s_waitcnt vmcnt(32)")
        layer1_post()
        a.label("L_A_not1")
    a("v_mov_b32 %s, 0" % v(vS))
    a("v_mov_b32 %s, 0" % v(vQ))
    a("s_barrier")
    for ft in range(3):
        wfrag_read(0, ft)
    nh = 0
    for s in range(32):
        if s == 15:
            a("s_barrier")
        if s == 19:
            for k in range(4):
                a("v_add_u32 %s, %d, %s" % (v(vWb + k), 5 * SLOT, v(vWb + k)))
        xs = vX + s * 4
        for ft in range(3):
            if ft == 0:
                a("s_waitcnt vmcnt(%d) lgkmcnt(%d)" % (31 - s + nh, 4 if s < 31 else 4))
            else:
                a("s_waitcnt lgkmcnt(%d)" % (4 if s < 31 else 4 - 2 * ft))
            acc = v(vAcc + ft * 16, 16)
            a("v_mfma_f32_32x32x16_bf16 %s, %s, %s, %s" % (acc, v(vWbuf + (s & 1) * 12 + ft * 4, 4), v(xs, 4), acc if s else "0"))
            if s < 31:
                wfrag_read(s + 1, ft)
            for m in ((0, 1), (2,), (3,))[ft]:
                a("v_dot2c_f32_bf16 %s, %s, %s" % (v(vS), v(xs + m), v(vOnes)))
                a("v_dot2c_f32_bf16 %s, %s, %s" % (v(vQ), v(xs + m), v(xs + m)))
        if halo and 16 <= s < 24:
            for u in (2 * (s - 16), 2 * (s - 16) + 1):
                if u == 0:
                    a("s_add_u32 %s, %s, %s" % (sOff, sHX, sXFB))
                    a("s_sub_u32 %s, %s, %d" % (sOff, sOff, 2 * MB))
                else:
                    a("s_add_u32 %s, %s, 2048" % (sOff, sOff))
                a("buffer_load_dwordx4 %s, %s, %s, %s offen sc1" % (v(vX + u * 4, 4), v(vHX), WS, sOff))
                nh += 1
    for k in range(4):
        a("v_subrev_u32 %s, %d, %s" % (v(vWb + k), 5 * SLOT, v(vWb + k)))
    if halo:
        a("v_mov_b32 %s, 0" % v(vHS))
        a("v_mov_b32 %s, 0" % v(vHQ))

        def hread(u):
            ch = u >> 1
            off = (ch * SLOT if ch < 5 else (ch - 5) * SLOT) + (u & 1) * 2048
            for half in range(2):
                a("ds_read_b64_tr_b16 %s, %s offset:%d" % (v(vWbuf + (u % 6) * 4 + half * 2, 2), v(vWh + (0 if ch < 5 else 1)), off + half * 1024))
        for u in range(4):
            hread(u)
        for u in range(16):
            rem = min(15 - u, 3)
            a("s_waitcnt vmcnt(%d) lgkmcnt(%d)" % (15 - u, 2 * rem))
            acc = v(vHacc, 4)
            a("v_mfma_f32_16x16x32_bf16 %s, %s, %s, %s" % (acc, v(vWbuf + (u % 6) * 4, 4), v(vX + u * 4, 4), acc if u else "0"))
            if u + 4 < 16:
                hread(u + 4)
            for m in range(4):
                a("v_dot2c_f32_bf16 %s, %s, %s" % (v(vHS), v(vX + u * 4 + m), v(vOnes)))
                a("v_dot2c_f32_bf16 %s, %s, %s" % (v(vHQ), v(vX + u * 4 + m), v(vX + u * 4 + m)))
    a("s_barrier")


def stats_finish(S, Q, rstd, nmr, t0, t1, four):
    for r in (S, Q):
        a("v_mov_b32 %s, %s" % (v(t0), v(r)))
        a("v_permlane32_swap_b32 %s, %s" % (v(r), v(t0)))
        a("v_add_f32 %s, %s, %s" % (v(r), v(r), v(t0)))
        if four:
            a("v_mov_b32 %s, %s" % (v(t0), v(r)))
            a("v_permlane16_swap_b32 %s, %s" % (v(r), v(t0)))
            a("v_add_f32 %s, %s, %s" % (v(r), v(r), v(t0)))
    a("v_mul_f32 %s, 0x3b000000, %s" % (v(S), v(S)))
    a("v_mul_f32 %s, 0x3b000000, %s" % (v(Q), v(Q)))
    a("v_fma_f32 %s, -%s, %s, %s" % (v(t0), v(S), v(S), v(Q)))
    a("v_max_f32 %s, 0, %s" % (v(t0), v(t0)))
    a("v_add_f32 %s, 0x3727c5ac, %s" % (v(t0), v(t0)))
    a("v_rsq_f32 %s, %s" % (v(rstd), v(t0)))
    a("v_mul_f32 %s, %s, %s" % (v(nmr), v(S), v(rstd)))
    a("v_sub_f32 %s, 0, %s" % (v(nmr), v(nmr)))


def ln_fold(acc, cs, n, rn):
    for r in range(0, n, 2):
        a("v_pk_mul_f32 %s, %s, %s op_sel:[0,1] op_sel_hi:[1,1]" % (v(cs + r, 2), v(cs + r, 2), v(rn, 2)))
    for r in range(0, n, 2):
        a("v_pk_fma_f32 %s, %s, %s, %s op_sel_hi:[1,0,1]" % (v(acc + r, 2), v(acc + r, 2), v(rn, 2), v(cs + r, 2)))


def cvt_pack(dst, src, n):
    for r in range(0, n, 2):
        a("v_cvt_pk_bf16_f32 %s, %s, %s" % (v(dst + r // 2), v(src + r), v(src + r + 1)))


def softmax_pm(P, E, T, out):
    mx, mn = T, T + 2
    a("v_max3_f32 %s, %s, %s, %s" % (v(mx), v(P), v(P + 1), v(P + 2)))
    a("v_min3_f32 %s, %s, %s, %s" % (v(mn), v(P), v(P + 1), v(P + 2)))
    for k in range(3, 15, 2):
        a("v_max3_f32 %s, %s, %s, %s" % (v(mx), v(mx), v(P + k), v(P + k + 1)))
        a("v_min3_f32 %s, %s, %s, %s" % (v(mn), v(mn), v(P + k), v(P + k + 1)))
    a("v_max_f32 %s, %s, %s" % (v(mx), v(mx), v(P + 15)))
    a("v_min_f32 %s, %s, %s" % (v(mn), v(mn), v(P + 15)))
    a("v_mul_f32 %s, s66, %s" % (v(mx), v(mx)))
    a("v_mul_f32 %s, s64, %s" % (v(mn), v(mn)))
    for r in range(0, 16, 2):
        a("v_pk_fma_f32 %s, %s, %s, %s op_sel_hi:[1,1,0]" % (v(E + r, 2), v(P + r, 2), sLOG, v(mx, 2)))
    for r in range(0, 16, 2):
        a("v_pk_fma_f32 %s, %s, %s, %s op_sel_hi:[1,1,0]" % (v(E + 16 + r, 2), v(P + r, 2), sNLOG, v(mn, 2)))
    for r in range(32):
        a("v_exp_f32 %s, %s" % (v(E + r), v(E + r)))
    for h in range(2):
        e = E + 16 * h
        p = P + 8 * h
        for k in range(4):
            a("v_pk_add_f32 %s, %s, %s" % (v(p + 2 * k, 2), v(e + 4 * k, 2), v(e + 4 * k + 2, 2)))
    for h in range(2):
        p = P + 8 * h
        a("v_pk_add_f32 %s, %s, %s" % (v(p, 2), v(p, 2), v(p + 2, 2)))
        a("v_pk_add_f32 %s, %s, %s" % (v(p + 4, 2), v(p + 4, 2), v(p + 6, 2)))
    for h in range(2):
        p = P + 8 * h
        a("v_pk_add_f32 %s, %s, %s" % (v(p, 2), v(p, 2), v(p + 4, 2)))
    for h in range(2):
        p = P + 8 * h
        a("v_add_f32 %s, %s, %s" % (v(p), v(p), v(p + 1)))
    a("v_rcp_f32 %s, %s" % (v(T + 4), v(P)))
    a("v_rcp_f32 %s, %s" % (v(T + 6), v(P + 8)))
    for h in range(2):
        for r in range(0, 16, 2):
            a("v_pk_mul_f32 %s, %s, %s op_sel_hi:[1,0]" % (v(E + 16 * h + r, 2), v(E + 16 * h + r, 2), v(T + 4 + 2 * h, 2)))
    cvt_pack(out, E, 32)


def read_colsum(dst, addr, fts):
    lin(addr, [HF + (16,)], MISC)
    for ft in fts:
        for g in range(4):
            a("ds_read_b128 %s, %s offset:%d" % (v(dst + ft * 16 + g * 4, 4), v(addr), (ft * 32 + g * 8) * 4))


def epilogue_A():
    CS, RN, P, E, T, PK = vX, vX + 48, vX + 50, vX + 66, vX + 98, vX + 106
    AD = vX + 122
    KB, VB, QB = vWbuf, vWbuf + 8, vWbuf + 16
    read_colsum(CS, AD, (1, 2, 0))
    stats_finish(vS, vQ, RN, RN + 1, vTmp, vT2, False)
    a("s_waitcnt lgkmcnt(4)")
    if DEBUG:
        a("s_waitcnt lgkmcnt(0)")
    dump("acc", vAcc, 48, 0, 1)
    dump("cs", CS, 50, 48, 1)
    ln_fold(vAcc + 16, CS + 16, 32, RN)
    dump("kvln", vAcc + 16, 32, 100, 1)
    cvt_pack(KB, vAcc + 16, 16)
    cvt_pack(VB, vAcc + 32, 16)
    a("v_mfma_f32_32x32x16_bf16 %s, %s, %s, 0" % (v(P, 16), v(vPhi, 4), v(KB, 4)))
    a("v_mfma_f32_32x32x16_bf16 %s, %s, %s, %s" % (v(P, 16), v(vPhi + 4, 4), v(KB + 4, 4), v(P, 16)))
    a("s_lshl_b32 %s, %s, 10" % (sT0, sW))
    lin(AD + 1, [T32 + (32,), HF + (16,)], VV, sT0)
    a("ds_write_b128 %s, %s" % (v(AD + 1), v(VB, 4)))
    a("ds_write_b128 %s, %s offset:4096" % (v(AD + 1), v(VB + 4, 4)))
    lin(AD + 2, [T32 + (32,), HF + (8192,)], PHI, sT0)
    dump("pk", P, 16, 140, 1)
    softmax_pm(P, E, T, PK)
    dump("phik", PK, 16, 160, 1)
    for fh in range(2):
        for q in range(2):
            a("ds_write_b128 %s, %s offset:%d" % (v(AD + 2), v(PK + fh * 8 + q * 4, 4), fh * 4096 + q * 16))
    a("s_and_b32 %s, %s, 1" % (sT0, sW))
    a("s_lshr_b32 %s, %s, 1" % (sT1, sW))
    a("s_lshl_b32 %s, %s, 13" % (sT2, sT0))
    a("s_lshl_b32 %s, %s, 12" % (sT1, sT1))
    a("s_add_u32 %s, %s, %s" % (sT2, sT2, sT1))
    a("s_lshl_b32 %s, %s, 12" % (sT0, sT0))
    lin(AD + 3, [G4 + (128,), R4 + (32,), C4 + (8,)], 0)
    a("v_add_u32 %s, %s, %s" % (v(AD + 4), sT0, v(AD + 3)))
    a("v_add_u32 %s, %s, %s" % (v(AD + 3), sT2, v(AD + 3)))
    a("s_waitcnt lgkmcnt(0)")
    a("s_barrier")
    FA, FB = E, E + 16
    for st in range(4):
        for half in range(2):
            a("ds_read_b64_tr_b16 %s, %s offset:%d" % (v(FA + st * 4 + half * 2, 2), v(AD + 3), PHI + st * 1024 + half * 512))
        for half in range(2):
            a("ds_read_b64_tr_b16 %s, %s offset:%d" % (v(FB + st * 4 + half * 2, 2), v(AD + 4), VV + st * 1024 + half * 512))
    ON = T
    for m in range(4):
        a("v_mov_b32 %s, %s" % (v(ON + m), v(vOnes)))
    KVa, Za = P, P + 4
    for st in range(4):
        a("s_waitcnt lgkmcnt(%d)" % (12 - 4 * st))
        a("v_mfma_f32_16x16x32_bf16 %s, %s, %s, %s" % (v(KVa, 4), v(FA + st * 4, 4), v(FB + st * 4, 4), v(KVa, 4) if st else "0"))
        a("v_mfma_f32_16x16x32_bf16 %s, %s, %s, %s" % (v(Za, 4), v(FA + st * 4, 4), v(ON, 4), v(Za, 4) if st else "0"))
    a("s_and_b32 %s, %s, 1" % (sT0, sW))
    a("s_lshr_b32 %s, %s, 1" % (sT1, sW))
    a("s_lshl_b32 %s, %s, 11" % (sT2, sT0))
    a("s_lshl_b32 %s, %s, 6" % (sT1, sT1))
    a("s_add_u32 %s, %s, %s" % (sT2, sT2, sT1))
    lin(AD + 5, [(2, 1, 1024), (3, 1, 512), (0, 3, 128), G4 + (16,)], 0, sT2)
    a("buffer_store_dwordx4 %s, %s, %s, %s offen sc1" % (v(KVa, 4), v(AD + 5), WS, sKVB))
    a("s_lshl_b32 %s, %s, 7" % (sT2, sT0))
    a("s_add_u32 %s, %s, %s" % (sT2, sT2, sT1))
    lin(AD + 5, [G4 + (16,)], 4096, sT2)
    a("s_mov_b32 s100, 0x00010001")
    a("s_mov_b32 s101, 0x00010001")
    a("s_mov_b64 exec, s[100:101]")
    a("buffer_store_dwordx4 %s, %s, %s, %s offen sc1" % (v(Za, 4), v(AD + 5), WS, sKVB))
    a("s_mov_b64 exec, -1")
    flag_store(sFKs, vTmp)
    ln_fold(vAcc, CS, 16, RN)
    cvt_pack(QB, vAcc, 16)
    a("v_mfma_f32_32x32x16_bf16 %s, %s, %s, 0" % (v(P, 16), v(vPhi, 4), v(QB, 4)))
    a("v_mfma_f32_32x32x16_bf16 %s, %s, %s, %s" % (v(P, 16), v(vPhi + 4, 4), v(QB + 4, 4), v(P, 16)))
    softmax_pm(P, E, T, PK)
    lin(AD + 3, [T32 + (64,)], KVF)
    lin(AD + 4, [HF + (64,)], ZF)
    KF, ZFr = E, E + 16
    for r in range(32):
        a("v_mov_b32 %s, 0" % v(E + r))
    a("s_barrier")
    a("s_mov_b64 exec, %s" % sKVM)
    for u in range(4):
        a("ds_read_b128 %s, %s offset:%d" % (v(KF + u * 4, 4), v(AD + 3), u * 16))
        a("ds_read_b128 %s, %s offset:%d" % (v(ZFr + u * 4, 4), v(AD + 4), u * 16))
    a("s_mov_b64 exec, -1")
    NUM, DEN = vAcc, vAcc + 16
    for u in range(4):
        a("s_waitcnt lgkmcnt(%d)" % (6 - 2 * u))
        a("v_mfma_f32_32x32x16_bf16 %s, %s, %s, %s" % (v(DEN, 16), v(ZFr + u * 4, 4), v(PK + u * 4, 4), v(DEN, 16) if u else "0"))
        a("v_mfma_f32_32x32x16_bf16 %s, %s, %s, %s" % (v(NUM, 16), v(KF + u * 4, 4), v(PK + u * 4, 4), v(NUM, 16) if u else "0"))
    a("s_barrier")
    for h in range(2):
        a("v_add_f32 %s, 0x358637bd, %s" % (v(T + 2 * h), v(DEN + 8 * h)))
    for h in range(2):
        a("v_rcp_f32 %s, %s" % (v(T + 2 * h), v(T + 2 * h)))
    for r in range(0, 16, 2):
        a("v_pk_mul_f32 %s, %s, %s op_sel_hi:[1,0]" % (v(NUM + r, 2), v(NUM + r, 2), v(T + 2 * (r >> 3), 2)))
    cvt_pack(P, NUM, 16)
    for u in range(2):
        a("buffer_store_dwordx4 %s, %s, %s, %s offen offset:%d sc1" % (v(P + u * 4, 4), v(vOstA), WS, sOFB, u * 512))
    flag_store(sFOs, vTmp)


def epilogue_B():
    CS, RN = vX + 64, vX + 112
    HRN, HCS = vX + 114, vX + 116
    AD = vX + 120
    QB, KB = vWbuf, vWbuf + 8
    read_colsum(CS, AD, (0, 1, 2))
    a("s_lshr_b32 %s, %s, 1" % (sT0, sW))
    a("s_and_b32 %s, %s, 1" % (sT1, sW))
    a("s_lshl_b32 %s, %s, 7" % (sT2, sT0))
    a("s_lshl_b32 %s, %s, 6" % (sT3, sT1))
    a("s_add_u32 %s, %s, %s" % (sT2, sT2, sT3))
    lin(AD + 1, [G4 + (16,)], MISC + 128, sT2)
    a("ds_read_b128 %s, %s" % (v(HCS, 4), v(AD + 1)))
    stats_finish(vS, vQ, RN, RN + 1, vTmp, vT2, False)
    stats_finish(vHS, vHQ, HRN, HRN + 1, vTmp, vT2, True)
    a("s_waitcnt lgkmcnt(0)")
    ln_fold(vAcc, CS, 48, RN)
    ln_fold(vHacc, HCS, 4, HRN)
    cvt_pack(QB, vAcc, 16)
    cvt_pack(KB, vAcc + 16, 16)
    for m in range(4):
        a("v_permlane32_swap_b32 %s, %s" % (v(KB + m), v(KB + 4 + m)))
    V = vAcc + 32
    for r in range(8):
        a("v_permlane32_swap_b32 %s, %s" % (v(V + r), v(V + 8 + r)))
    for m in range(4):
        a("v_permlane32_swap_b32 %s, %s" % (v(QB + m), v(QB + 4 + m)))
    a("s_lshl_b32 %s, %s, 9" % (sT2, sW))
    lin(AD + 2, [T32 + (16,), HF + (144 * 16,)], 2 * 16, sT2)
    for p in range(2):
        a("ds_write_b128 %s, %s offset:%d" % (v(AD + 2), v(KB + p * 4, 4), KK + p * 2 * 144 * 16 + 14 * 16))
    for p in range(4):
        a("ds_write_b128 %s, %s offset:%d" % (v(AD + 2), v(V + p * 4, 4), VF + p * 2 * 144 * 16 + 14 * 16))
    a("s_mul_i32 %s, %s, %d" % (sT3, sT1, 144 * 16))
    a("s_cmp_eq_u32 %s, 0" % sT0)
    a("s_cbranch_scc0 L_B_halo_v")
    lin(AD + 3, [G4L + (2 * 144 * 16,), T16 + (16,), G4H + (8,)], KK, sT3)
    cvt_pack(HCS, vHacc, 4)
    a("ds_write_b64 %s, %s" % (v(AD + 3), v(HCS, 2)))
    a("s_branch L_B_halo_done")
    a.label("L_B_halo_v")
    lin(AD + 3, [G4H + (2 * 144 * 16,), G4L + (4 * 144 * 16,), T16 + (16,)], VF, sT3)
    a("ds_write_b128 %s, %s" % (v(AD + 3), v(vHacc, 4)))
    a.label("L_B_halo_done")
    a("s_waitcnt lgkmcnt(0)")
    a("s_barrier")
    KR = vX
    LG = vX + 56
    VR0 = vX + 64
    for wd in range(1, 8):
        for p in range(2):
            a("ds_read_b128 %s, %s offset:%d" % (v(KR + (wd - 1) * 8 + p * 4, 4), v(AD + 2), KK + p * 2 * 144 * 16 + (14 - 2 * wd) * 16))
    def vdst(wd):
        if wd <= 3:
            return VR0 + (wd - 1) * 16
        if wd <= 5:
            return vAcc + (wd - 4) * 16
        return KR + (wd - 6) * 16

    def vread(wd):
        for p in range(4):
            a("ds_read_b128 %s, %s offset:%d" % (v(vdst(wd) + p * 4, 4), v(AD + 2), VF + p * 2 * 144 * 16 + (14 - 2 * wd) * 16))
    for m in range(8):
        if m == 0:
            a("v_dot2_f32_bf16 %s, %s, %s, 0" % (v(LG), v(QB), v(KB)))
        else:
            a("v_dot2c_f32_bf16 %s, %s, %s" % (v(LG), v(QB + m), v(KB + m)))
    a("s_waitcnt lgkmcnt(0)")
    for wd in range(1, 6):
        vread(wd) if wd <= 3 else None
    for m in range(8):
        for wd in range(1, 8):
            k = KR + (wd - 1) * 8 + m
            if m == 0:
                a("v_dot2_f32_bf16 %s, %s, %s, 0" % (v(LG + wd), v(QB), v(k)))
            else:
                a("v_dot2c_f32_bf16 %s, %s, %s" % (v(LG + wd), v(QB + m), v(k)))
    vread(4)
    vread(5)
    vread(6)
    vread(7)
    a("s_or_b32 %s, %s, %s" % (sT0, sC, sW))
    a("s_cmp_lg_u32 %s, 0" % sT0)
    a("s_cbranch_scc1 L_B_nomask")
    lanebits(vTmp, 0, 31)
    a("v_mov_b32 %s, 0xf149f2ca" % v(vT2))
    for wd in range(1, 8):
        a("v_cmp_le_u32 vcc, %d, %s" % (2 * wd, v(vTmp)))
        a("v_cndmask_b32 %s, %s, %s, vcc" % (v(LG + wd), v(vT2), v(LG + wd)))
    a.label("L_B_nomask")
    a("s_nop 2")
    MX = RN
    a("v_max3_f32 %s, %s, %s, %s" % (v(MX), v(LG), v(LG + 1), v(LG + 2)))
    a("v_max3_f32 %s, %s, %s, %s" % (v(MX), v(MX), v(LG + 3), v(LG + 4)))
    a("v_max3_f32 %s, %s, %s, %s" % (v(MX), v(MX), v(LG + 5), v(LG + 6)))
    a("v_max_f32 %s, %s, %s" % (v(MX), v(MX), v(LG + 7)))
    a("v_mul_f32 %s, s68, %s" % (v(MX), v(MX)))
    a("v_sub_f32 %s, 0, %s" % (v(MX), v(MX)))
    for r in range(0, 8, 2):
        a("v_pk_fma_f32 %s, %s, %s, %s op_sel_hi:[1,1,0]" % (v(LG + r, 2), v(LG + r, 2), sQLOG, v(MX, 2)))
    for r in range(8):
        a("v_exp_f32 %s, %s" % (v(LG + r), v(LG + r)))
    SM = HRN
    a("v_pk_add_f32 %s, %s, %s" % (v(SM, 2), v(LG, 2), v(LG + 2, 2)))
    a("v_pk_add_f32 %s, %s, %s" % (v(SM + 2, 2), v(LG + 4, 2), v(LG + 6, 2)))
    a("v_pk_add_f32 %s, %s, %s" % (v(SM, 2), v(SM, 2), v(SM + 2, 2)))
    a("v_add_f32 %s, %s, %s" % (v(SM), v(SM), v(SM + 1)))
    a("v_rcp_f32 %s, %s" % (v(SM), v(SM)))
    for r in range(0, 8, 2):
        a("v_pk_mul_f32 %s, %s, %s op_sel_hi:[1,0]" % (v(LG + r, 2), v(LG + r, 2), v(SM, 2)))
    for r in range(0, 16, 2):
        a("v_pk_mul_f32 %s, %s, %s op_sel_hi:[1,0]" % (v(V + r, 2), v(V + r, 2), v(LG, 2)))
    for wd in range(1, 8):
        a("s_waitcnt lgkmcnt(%d)" % min(15, 4 * (7 - wd)))
        sel = "op_sel:[0,1,0] op_sel_hi:[1,1,1]" if wd & 1 else "op_sel_hi:[1,0,1]"
        for r in range(0, 16, 2):
            a("v_pk_fma_f32 %s, %s, %s, %s %s" % (v(V + r, 2), v(vdst(wd) + r, 2), v(LG + (wd & ~1), 2), v(V + r, 2), sel))
    a("s_barrier")
    cvt_pack(QB, V, 16)
    for u in range(2):
        a("buffer_store_dwordx4 %s, %s, %s, %s offen offset:%d sc1" % (v(QB + u * 4, 4), v(vOstB), WS, sOFB, u * 256))
    flag_store(sFOs, vTmp)


def wo_phase(tag, last_possible):
    if tag == "A":
        a("s_cmp_lg_u32 %s, 1" % sL)
        a("s_cbranch_scc1 L_hs_done")
        a("v_lshlrev_b32 %s, 2, %s" % (v(vT2), v(vLane)))
        a("s_mov_b32 %s, 0x01010101" % sT0)
        poll("hsC", vT2, DBG, sT0, vTmp, eq=True)
        a.label("L_hs_done")
    poll("O" + tag, vPollO, WS, sL, vTmp)
    a("s_lshl_b32 %s, %s, 1" % (sT0, sC))
    a("s_add_u32 %s, %s, %s" % (sT0, sT0, sRH))
    a("s_lshl_b32 %s, %s, 2" % (sT0, sT0))
    a("s_add_u32 %s, %s, %s" % (sT0, sT0, sW))
    a("s_lshl_b32 %s, %s, 14" % (sT0, sT0))
    a("s_add_u32 %s, %s, %s" % (sOff, sT0, sOFB))
    for u in range(16):
        a("buffer_load_dwordx4 %s, %s, %s, %s offen offset:%d sc1" % (v(vX + u * 4, 4), v(vOld), WS, sOff, (u & 3) * 1024))
        if u & 3 == 3 and u < 15:
            a("s_add_u32 %s, %s, 4096" % (sOff, sOff))
    a("s_barrier")
    WB = vX + 64

    def rd(u):
        for ct in range(4):
            for half in range(2):
                a("ds_read_b64_tr_b16 %s, %s offset:%d" % (v(WB + (u % 3) * 16 + ct * 4 + half * 2, 2), v(vWob + ct), u * 4096 + half * 1024))
    rd(0)
    for u in range(16):
        if u + 1 < 16:
            rd(u + 1)
        for ct in range(4):
            n = (8 if u + 1 < 16 else 0) + (3 - ct) * 2
            if ct == 0:
                a("s_waitcnt vmcnt(%d) lgkmcnt(%d)" % (15 - u, n))
            else:
                a("s_waitcnt lgkmcnt(%d)" % n)
            acc = v(vAcc + ct * 4, 4)
            a("v_mfma_f32_16x16x32_bf16 %s, %s, %s, %s" % (acc, v(WB + (u % 3) * 16 + ct * 4, 4), v(vX + u * 4, 4), acc if u else "0"))
    for r in range(0, 16, 2):
        a("v_pk_add_f32 %s, %s, %s" % (v(vAcc + r, 2), v(vAcc + r, 2), v(vRes + r, 2)))
    PKo = vAcc + 16
    cvt_pack(PKo, vAcc, 16)
    if last_possible:
        a("s_cmp_eq_u32 %s, 4" % sL)
        a("s_cbranch_scc1 L_final")
    for cp in range(2):
        a("buffer_store_dwordx4 %s, %s, %s, %s offen offset:%d sc1" % (v(PKo + cp * 4, 4), v(vXst), WS, sXFB, cp * 2048))
    for m in range(8):
        a("v_lshlrev_b32 %s, 16, %s" % (v(vRes + 2 * m), v(PKo + m)))
        a("v_and_b32 %s, 0xffff0000, %s" % (v(vRes + 2 * m + 1), v(PKo + m)))
    flag_store(sFXs, vTmp)


def next_layer():
    a("s_lshl_b32 %s, %s, 2" % (sT1, sC))
    a("s_add_u32 %s, %s, %s" % (sT1, sT1, sW))
    a("s_lshl_b32 %s, %s, 15" % (sXB, sT1))
    a("s_add_u32 %s, %s, %s" % (sXB, sXB, sXFB))
    a("s_add_u32 %s, %s, %d" % (sXFB, sXFB, 2 * MB))
    a("s_add_u32 %s, %s, %d" % (sOFB, sOFB, 2 * MB))


def compute_main():
    compute_init()
    a.label("L_A_start")
    poll("XA", vPollX, WS, sL, vTmp)
    a("s_add_u32 %s, %s, 1" % (sL, sL))
    a.label("L_A_loads")
    qkv_gemm("A", False)
    epilogue_A()
    wo_phase("A", False)
    a("s_cmp_lg_u32 %s, 1" % sL)
    a("s_cbranch_scc1 L_A_sw")
    for k in range(4):
        a("s_mov_b32 s%d, s%d" % (44 + k, 40 + k))
    a("s_mov_b32 %s, 1024" % sStride)
    a("v_mov_b32 %s, %s" % (v(vXaddr), v(vOld)))
    set_wb(False)
    a.label("L_A_sw")
    next_layer()
    poll("XB", vPollX, WS, sL, vTmp)
    a("s_add_u32 %s, %s, 1" % (sL, sL))
    qkv_gemm("B", True)
    epilogue_B()
    wo_phase("B", True)
    next_layer()
    a("s_add_u32 %s, %s, %d" % (sKVB, sKVB, 2 * MB))
    a("s_branch L_A_start")
    a.label("L_final")
    PKo = vAcc + 16
    for ct in range(4):
        a("buffer_store_dwordx2 %s, %s, %s, 0 offen offset:%d" % (v(PKo + ct * 2, 2), v(vOutst), OUT, ct * 32))
    a("s_branch L_end")


hWv = 2
hOv = 3
hCs = 4
hOnes = 8
hCsA = 12
hCsW = 16
hPoll = 18
hKV = 19
hZ = 20
hLW = 21
hLZ = 22
hT = 23
hT2 = 24
hBuf = 32


def dma_w(srcsrd, chunks):
    for ch in chunks:
        for ft in range(3):
            a("s_add_u32 m0, %s, %d" % (sH1K, ch * SLOT + ft * 4096))
            a("s_mov_b32 %s, %d" % (sOff, ch * 196608 + ft * 1024))
            a("buffer_load_dwordx4 %s, %s, %s offen lds" % (v(hWv), srcsrd, sOff))


def dma_wo(srcsrd, ts):
    for t in ts:
        a("s_add_u32 m0, %s, %d" % (sH1K, WOB + t * 4096))
        a("s_mov_b32 %s, %d" % (sOff, t * 32768))
        a("buffer_load_dwordx4 %s, %s, %s offen lds" % (v(hOv), srcsrd, sOff))


def colsum_tile(base, dst, tag):
    def rd(st):
        ch = st >> 1
        off = (ch * SLOT if ch < 5 else (ch - 5) * SLOT) + (st & 1) * 2048
        for half in range(2):
            a("ds_read_b64_tr_b16 %s, %s offset:%d" % (v(hBuf + (st % 8) * 4 + half * 2, 2), v(base + (0 if ch < 5 else 1)), off + half * 256))
    for st in range(6):
        rd(st)
    acc = v(hBuf + 40, 4)
    for st in range(16):
        rem = min(15 - st, 5)
        a("s_waitcnt lgkmcnt(%d)" % (2 * rem))
        a("v_mfma_f32_16x16x32_bf16 %s, %s, %s, %s" % (acc, v(hOnes, 4), v(hBuf + (st % 8) * 4, 4), acc if st else "0"))
        if st + 6 < 16:
            rd(st + 6)
    a("v_mov_b32 %s, %s" % (v(dst), v(hBuf + 40)))


def helper_colsum(tag, sv):
    a("s_cmp_lg_u32 %s, 0" % sIT)
    a("s_cbranch_scc1 L_cs_skip_%s" % tag)
    colsum_tile(hCs, sv, tag + "1")
    a("s_cmp_ge_u32 %s, 2" % sW)
    a("s_cbranch_scc1 L_cs_skip_%s" % tag)
    colsum_tile(hCs + 2, sv + 1, tag + "2")
    a.label("L_cs_skip_%s" % tag)
    a("s_nop 7")
    a("s_nop 7")
    a("ds_write_b32 %s, %s" % (v(hCsW), v(sv)))
    a("s_cmp_ge_u32 %s, 2" % sW)
    a("s_cbranch_scc1 L_cs_w_%s" % tag)
    a("ds_write_b32 %s, %s" % (v(hCsW + 1), v(sv + 1)))
    a.label("L_cs_w_%s" % tag)
    a("s_waitcnt lgkmcnt(0)")


def helper_main():
    a.label("L_helper")
    a("s_lshl_b32 %s, %s, 10" % (sH1K, sW))
    tmp = hT
    a("s_mul_i32 %s, %s, %d" % (sT0, sW, 16 * 3072))
    a("s_lshl_b32 %s, %s, 6" % (sT1, sI))
    a("s_add_u32 %s, %s, %s" % (sT0, sT0, sT1))
    lin(hWv, [(2, 15, 3072), C4 + (16,)], 0, sT0, tmp=tmp)
    dma_w(WQA, range(8))
    a("v_lshlrev_b32 %s, 4, %s" % (v(hT2), v(vLane)))
    a("v_add_u32 %s, %s, %s" % (v(hT2), sH1K, v(hT2)))
    for k in range(CODE_KB4):
        a("s_mov_b32 %s, %d" % (sOff, k * 4096))
        a("buffer_load_dwordx4 %s, %s, %s, %s offen" % (v(hBuf + 64 + (k % 8) * 4, 4), v(hT2), CODE, sOff))
    lanebits(hT2, 1, 3)
    lanebits(tmp, 4, 3)
    a("v_xor_b32 %s, %s, %s" % (v(hT2), v(hT2), v(tmp)))
    a("s_lshl_b32 %s, %s, 13" % (sT0, sW))
    a("s_lshl_b32 %s, %s, 7" % (sT1, sCB))
    a("s_add_u32 %s, %s, %s" % (sT0, sT0, sT1))
    lin(hOv, [(3, 7, 1024), (0, 1, 16)], 0, sT0, tmp=tmp)
    a("v_lshl_add_u32 %s, %s, 5, %s" % (v(hOv), v(hT2), v(hOv)))
    for k in range(2):
        a("s_add_u32 %s, %s, %d" % (sT0, sW, 4 * k))
        a("s_lshr_b32 %s, %s, 1" % (sT1, sT0))
        a("s_lshl_b32 %s, %s, 12" % (sT1, sT1))
        a("s_and_b32 %s, %s, 1" % (sT2, sT0))
        a("s_lshl_b32 %s, %s, 5" % (sT2, sT2))
        a("s_add_u32 %s, %s, %s" % (sT1, sT1, sT2))
        lin(hCs + 2 * k, [G4 + (512,), R4 + (64,), C4 + (8,)], 0, sT1, tmp=tmp)
        a("v_add_u32 %s, %d, %s" % (v(hCs + 2 * k + 1), 5 * SLOT, v(hCs + 2 * k)))
        a("s_lshl_b32 %s, %s, 6" % (sT0, sT0))
        lin(hCsW + k, [T16 + (4,)], MISC, sT0, tmp=tmp)
    for m in range(4):
        a("v_mov_b32 %s, 0x3f803f80" % v(hOnes + m))
        a("v_mov_b32 %s, 0" % v(hCsA + m))
    a("s_lshl_b32 %s, %s, 8" % (sT0, sI))
    lin(hPoll, [(0, 63, 4)], FK, sT0, tmp=tmp)
    lin(hKV, [(0, 63, 16)], 0, sH1K, tmp=tmp)
    lin(hZ, [T16 + (16,)], 4096, tmp=tmp)
    a("s_lshl_b32 %s, %s, 9" % (sT0, sW))
    lin(hLW, [(0, 63, 8)], KVF, sT0, tmp=tmp)
    lin(hLZ, [T16 + (8,)], ZF, tmp=tmp)
    a("s_mul_i32 %s, %s, %d" % (sKVB, sI, 16 * KVP_STRIDE))
    a("s_add_u32 %s, %s, %d" % (sKVB, sKVB, KVP0))
    a("s_waitcnt vmcnt(%d)" % (12 + CODE_KB4))
    a.label("L_H_loop")
    a("s_barrier")
    a("s_or_b32 %s, %s, %s" % (sT0, sIT, sW))
    a("s_cmp_lg_u32 %s, 0" % sT0)
    a("s_cbranch_scc1 L_H_nodbg")
    a("v_mov_b32 %s, 1" % v(hT))
    a("s_mov_b64 exec, 1")
    a("buffer_store_byte %s, off, %s, %s sc1" % (v(hT), DBG, sWG))
    a("s_mov_b64 exec, -1")
    a.label("L_H_nodbg")
    a("s_waitcnt vmcnt(0)")
    a("s_barrier")
    dma_wo(WOA, range(15))
    helper_colsum("A", hCsA)
    a("s_barrier")
    a("s_barrier")
    dma_wo(WOA, [15])
    a("s_cmp_lg_u32 %s, 0" % sIT)
    a("s_cbranch_scc1 L_H_hs")
    a("v_lshlrev_b32 %s, 2, %s" % (v(hT2), v(vLane)))
    a("s_mov_b32 %s, 0x01010101" % sT0)
    poll("hsH", hT2, DBG, sT0, hT, eq=True)
    a.label("L_H_hs")
    poll("K", hPoll, WS, sL, hT)
    a("s_mov_b32 %s, %s" % (sOff, sKVB))
    for c in range(16):
        a("buffer_load_dwordx4 %s, %s, %s, %s offen sc1" % (v(hBuf + c * 4, 4), v(hKV), WS, sOff))
        a("buffer_load_dwordx4 %s, %s, %s, %s offen sc1" % (v(hBuf + 64 + c * 4, 4), v(hZ), WS, sOff))
        if c < 15:
            a("s_add_u32 %s, %s, %d" % (sOff, sOff, KVP_STRIDE))
    for c in range(1, 16):
        a("s_waitcnt vmcnt(%d)" % (2 * (15 - c)))
        for base in (hBuf, hBuf + 64):
            for r in (0, 2):
                a("v_pk_add_f32 %s, %s, %s" % (v(base + r, 2), v(base + r, 2), v(base + c * 4 + r, 2)))
    for base, ad in ((hBuf, hLW), (hBuf + 64, hLZ)):
        a("v_cvt_pk_bf16_f32 %s, %s, %s" % (v(base), v(base), v(base + 1)))
        a("v_cvt_pk_bf16_f32 %s, %s, %s" % (v(base + 1), v(base + 2), v(base + 3)))
        a("ds_write_b64 %s, %s" % (v(ad), v(base, 2)))
    a("s_waitcnt lgkmcnt(0)")
    a("s_barrier")
    dma_w(WQB, range(3, 8))
    a("s_barrier")
    dma_w(WQB, range(0, 3))
    a("s_barrier")
    a("s_waitcnt vmcnt(0)")
    a("s_add_u32 %s, %s, 1" % (sL, sL))
    a("s_barrier")
    a("s_barrier")
    dma_wo(WOBS, range(15))
    helper_colsum("B", hCsA + 2)
    a("s_barrier")
    a("s_barrier")
    dma_wo(WOBS, [15])
    a("s_cmp_lg_u32 %s, 0" % sIT)
    a("s_cbranch_scc1 L_H_last")
    dma_w(WQA, range(3, 8))
    a("s_barrier")
    dma_w(WQA, range(0, 3))
    a("s_waitcnt vmcnt(24)")
    a("s_barrier")
    a("s_waitcnt vmcnt(0)")
    a("s_add_u32 %s, %s, 1" % (sL, sL))
    a("s_mov_b32 %s, 1" % sIT)
    a("s_add_u32 %s, %s, %d" % (sKVB, sKVB, 2 * MB))
    a("s_branch L_H_loop")
    a.label("L_H_last")
    a("s_barrier")
    a("s_waitcnt vmcnt(0)")
    a("s_barrier")


CODE_KB4 = 8


def build():
    prologue()
    compute_main()
    helper_main()
    a.label("L_end")
    a("s_endpgm")
    a.label("L_codeend")
    hdr = open("cdna_kernels/%s.s.ref" % NAME).read().split("\n")
    head = [l for l in hdr if l.startswith(";") and "@launch" not in l]
    out = "\n".join(head) + "\n"
    out += "; @launch grid=(256,1,1) block=(512,1,1) lds=163840\n"
    out += '.amdgcn_target "amdgcn-amd-amdhsa--gfx950"\n.text\n.globl %s\n.p2align 8\n.type %s,@function\n%s:\n' % (KN, KN, KN)
    out += a.text()
    out += """.section .rodata,"a"
.p2align 6
.amdhsa_kernel %s
  .amdhsa_next_free_vgpr 256
  .amdhsa_next_free_sgpr 102
  .amdhsa_accum_offset 256
  .amdhsa_group_segment_fixed_size 0
  .amdhsa_kernarg_size 80
  .amdhsa_user_sgpr_count 2
  .amdhsa_user_sgpr_kernarg_segment_ptr 1
  .amdhsa_system_sgpr_workgroup_id_x 1
.end_amdhsa_kernel
""" % KN
    return out


if __name__ == "__main__":
    path = sys.argv[1] if len(sys.argv) > 1 else "cdna_kernels/%s.s" % NAME
    open(path, "w").write(build())
    print("wrote", path)
```
